```python
import torch

def _softmax(x, axis=-1):
    return torch.softmax(x, dim=axis)
def _gelu(x):
    return torch.nn.functional.gelu(x, approximate="tanh")
def _silu(x):
    return torch.nn.functional.silu(x)
def _sigmoid(x):
    return torch.sigmoid(x)
def _layernorm(x, axis=-1, eps=1e-5):
    m = x.mean(dim=axis, keepdim=True)
    v = x.var(dim=axis, keepdim=True, unbiased=False)
    return (x - m) / torch.sqrt(v + eps)
def _scatter_add(tgt, idx, src, axis=0):
    return tgt.clone().index_add_(axis, idx, src)
def _segment_sum(src, seg, n):
    out = torch.zeros((n,) + src.shape[1:], dtype=src.dtype)
    return out.index_add_(0, seg, src)
def _pad(x, pw):
    flat = tuple(v for pair in reversed(pw) for v in pair)
    return torch.nn.functional.pad(x, flat)

kernel_name = 'recurrent_scan__ssm_conv_h3__glu_gated_glu__prompt'

def setup_inputs():

    _w = (lambda a: (lambda t: t.to(torch.bfloat16) if t.is_floating_point() else t)(torch.as_tensor(a)))
    def _A_setup():
        B, S, D = 1, 2048, 640
        ks = 4
        return {
            "q": _w((lambda *s: torch.randn(*s, dtype=torch.bfloat16) * 0.05)(B, S, D)),
            "k": _w((lambda *s: torch.randn(*s, dtype=torch.bfloat16) * 0.2)(B, S, D)),
            "v": _w((lambda *s: torch.randn(*s, dtype=torch.bfloat16) * 0.2)(B, S, D)),
            "shift_k": _w((lambda *s: torch.randn(*s, dtype=torch.bfloat16) * 0.2)(D, ks) * 0.5),
            "ssm_k": _w((lambda *s: torch.randn(*s, dtype=torch.bfloat16) * 0.2)(D, S) * (1.0 / S ** 0.5)),
            "ssm_D": _w((lambda *s: torch.randn(*s, dtype=torch.bfloat16) * 0.2)(D)),
        }
    _A_in = _A_setup()

    def _B_setup():
        B, S, D, F = 1, 2048, 640, 1728
        return {
            "x": _w((lambda *s: torch.randn(*s, dtype=torch.bfloat16) * 0.05)(B, S, D)),
            "w_gate": _w((lambda *s: torch.randn(*s, dtype=torch.bfloat16) * 0.2)(D, F)),
            "w_up": _w((lambda *s: torch.randn(*s, dtype=torch.bfloat16) * 0.1)(D, F)),
            "w_down": _w((lambda *s: torch.randn(*s, dtype=torch.bfloat16) * 0.1)(F, D)),
        }
    _B_in = _B_setup()

    return {
        "A_q": _A_in["q"],
        "A_k": _A_in["k"],
        "A_v": _A_in["v"],
        "A_shift_k": _A_in["shift_k"],
        "A_ssm_k": _A_in["ssm_k"],
        "A_ssm_D": _A_in["ssm_D"],
        "B_x": _B_in["x"],
        "B_w_gate": _B_in["w_gate"],
        "B_w_up": _B_in["w_up"],
        "B_w_down": _B_in["w_down"],
    }

def reference(A_q, A_k, A_v, A_shift_k, A_ssm_k, A_ssm_D, B_x, B_w_gate, B_w_up, B_w_down):
    def _A_ref(q, k, v, shift_k, ssm_k, ssm_D):
        B, S, D = q.shape
        ks = shift_k.shape[-1]
        k_pad = _pad(k, ((0, 0), (ks - 1, 0), (0, 0)))
        k_shift = torch.zeros_like(k)
        for t in range(ks):
            k_shift = k_shift + k_pad[:, t:t + S, :] * shift_k[:, ks - 1 - t][None, None, :]
        kv = k_shift * v
        L = 2 * S
        kv_pad = _pad(kv, ((0, 0), (0, S), (0, 0)))
        kf_pad = _pad(ssm_k, ((0, 0), (0, S)))
        kv_f = (lambda x, axes=(-2,-1): torch.fft.rfft2(x.float(), dim=axes))(kv_pad[:, None, :, :], axes=(1, 2))
        kf_f = (lambda x, axes=(-2,-1): torch.fft.rfft2(x.float(), dim=axes))(kf_pad[:, None, :], axes=(1, 2))
        kf_f = (lambda x, *d: x.permute(*d))(kf_f, 1, 2, 0)
        y_f = kv_f * kf_f[None, :, :, :]
        y = (lambda x, s, axes=(-2,-1): torch.fft.irfft2(x, s=s, dim=axes).to(torch.bfloat16))(y_f, (1, L), axes=(1, 2))[:, 0, :S, :]
        y = y + kv * ssm_D[None, None, :]
        return q * y

    def _B_ref(x, w_gate, w_up, w_down):
        g = torch.einsum("bsd,df->bsf", x, w_gate)
        u = torch.einsum("bsd,df->bsf", x, w_up)
        h = _sigmoid(g) * u
        return torch.einsum("bsf,fd->bsd", h, w_down)

    x = A_q
    xn = _layernorm(x, axis=-1)
    s = _A_ref(xn, A_k, A_v, A_shift_k, A_ssm_k, A_ssm_D)
    g = _silu(_B_ref(xn, B_w_gate, B_w_up, B_w_down))
    return x + s * g
```

```python
import re
REG = re.compile(r'\b([vas])(\d+)\b|\b([vas])\[(\d+):(\d+)\]')
TRANS = ('v_exp_f32', 'v_log_f32', 'v_rcp_f32', 'v_rsq_f32', 'v_sqrt_f32')
def regs_of(op):
    out = set()
    for m in REG.finditer(op):
        if m.group(1): out.add((m.group(1), int(m.group(2))))
        else:
            for i in range(int(m.group(4)), int(m.group(5)) + 1): out.add((m.group(3), i))
    if re.search(r'\bvcc\b', op): out.add(('s', 'vcc'))
    if re.search(r'\bm0\b', op): out.add(('s', 'm0'))
    return out
class I:
    def __init__(s, text):
        s.text = text; t = text.split(';')[0].strip()
        s.mn = t.split()[0] if t else ''
        rest = t[len(s.mn):].strip()
        ops = [o.strip() for o in re.split(r',(?![^\[]*\])', rest)] if rest else []
        s.ops = ops; mn = s.mn
        s.label = mn.endswith(':')
        s.kind = ('label' if s.label else 'mfma' if mn.startswith('v_mfma') else 'valu' if mn.startswith('v_') else
                  'ds' if mn.startswith('ds_') else 'vmem' if mn.startswith(('buffer_', 'global_')) else 'salu')
        s.w = set(); s.r = set(); s.c = set(); s.ab = set()
        allr = [regs_of(o) for o in ops]
        s.lds_dma = s.kind == 'vmem' and re.search(r'\blds\b', rest) is not None
        if s.kind == 'mfma':
            s.w = allr[0]; s.ab = allr[1] | allr[2]; s.c = allr[3]; s.r = s.ab | s.c
            s.passes = 8 if '32x32' in mn else 4
        elif s.kind == 'valu':
            s.w = set(allr[0]); s.r = set().union(*allr[1:]) if len(allr) > 1 else set()
            if 'swap' in mn: s.w |= allr[1]; s.r |= allr[0]
            if mn.startswith(('v_fmac', 'v_dot2c', 'v_writelane')): s.r |= allr[0]
            if mn.startswith(('v_add_co', 'v_sub_co', 'v_addc_co')): s.w |= allr[1]
        elif s.kind == 'ds':
            if 'read' in mn or 'permute' in mn or 'swizzle' in mn: s.w = allr[0]; s.r = set().union(*allr[1:])
            else: s.r = set().union(*allr)
        elif s.kind == 'vmem':
            if ('load' in mn and not s.lds_dma): s.w = allr[0]; s.r = set().union(*allr[1:])
            elif 'atomic' in mn and 'sc0' in rest: s.w = allr[0]; s.r = set().union(*allr)
            else: s.r = set().union(*allr) if allr else set()
            if s.lds_dma: s.r.add(('s', 'm0'))
            s.wide = 'store' in mn and ('x4' in mn or 'x3' in mn)
            s.data = allr[0] if allr else set()
        elif s.kind == 'salu':
            if mn.startswith(('s_cmp', 's_waitcnt', 's_barrier', 's_nop', 's_branch', 's_cbranch', 's_endpgm', 's_sleep', 's_setprio')):
                s.r = set().union(*allr) if allr else set()
            elif allr: s.w = allr[0]; s.r = set().union(*allr[1:]) if len(allr) > 1 else set()
        s.states = int(ops[0]) + 1 if mn == 's_nop' else (0 if s.label or not mn else 1)
def need(p, c):
    n = 0
    vw = {x for x in p.w if x[0] in 'va'}; sw = {x for x in p.w if x[0] == 's'}
    if p.kind == 'valu':
        if c.kind == 'mfma' and vw & c.r: n = max(n, 2)
        if c.kind == 'valu':
            if p.mn.startswith(TRANS) and not c.mn.startswith(TRANS) and vw & c.r: n = max(n, 1)
            if p.mn.startswith('v_dot2') and (vw & (c.r | c.w)):
                same = c.mn == p.mn and not (vw & (regs_of(c.ops[1]) | regs_of(c.ops[2])))
                if not same: n = max(n, 3)
            if 'permlane' in c.mn and vw & c.r: n = max(n, 2)
            if ('dpp' in c.text) and vw & c.r: n = max(n, 2)
            if c.mn.startswith(('v_readfirstlane', 'v_readlane')) and vw & c.r: n = max(n, 1)
            if sw & c.r: n = max(n, 4 if c.mn.startswith(('v_readlane', 'v_writelane')) else 2)
            if ('sdwa' in p.text or 'op_sel' in p.text) and vw & c.r: n = max(n, 1)
        if p.mn.startswith('v_dot2') and c.kind in ('mfma', 'vmem', 'ds') and vw & c.r: n = max(n, 3)
        if c.kind == 'vmem' and sw & c.r: n = max(n, 5)
        if c.kind == 'salu' and sw & c.r: n = max(n, 2)
    if p.kind == 'mfma':
        big = {4: 8, 8: 12}[p.passes]
        if c.kind == 'mfma':
            if p.w & c.ab: n = max(n, big)
            if p.w & c.c and not (p.w == c.c and p.passes == c.passes): n = max(n, big - 2)
            if p.w & c.w and not (p.w & c.c): n = max(n, big)
        elif c.kind in ('valu', 'ds', 'vmem') and p.w & (c.r | c.w): n = max(n, big)
        if c.kind == 'valu' and p.c & c.w: n = max(n, {4: 3, 8: 7}[p.passes])
    if p.kind == 'salu' and ('s', 'm0') in p.w and getattr(c, 'lds_dma', False): n = max(n, 1)
    if p.kind == 'vmem' and getattr(p, 'wide', False) and p.data & c.w: n = max(n, 2 if c.kind == 'valu' else 1)
    return n
class Prog:
    def __init__(s): s.ins = []; s.vm = []; s.lg = []; s.nops = 0
    def __call__(s, text):
        for line in text.strip().split('\n'):
            line = line.strip()
            if line: s.emit(line)
    def emit(s, line, tag=None):
        c = I(line)
        dist = 0; req = 0
        for p in reversed(s.ins[-24:]):
            if p.mn in ('s_branch', 's_endpgm'): break
            r = need(p, c) - dist
            if r > req: req = r
            dist += p.states
            if dist >= 20: break
        if req > 0:
            s.ins.append(I(f's_nop {req-1}')); s.nops += req
        s.ins.append(c)
        if c.kind == 'vmem': s.vm.append(tag)
        if c.kind == 'ds': s.lg.append(tag)
        if c.mn == 's_waitcnt':
            if 'vmcnt(0)' in line: s.vm = []
            if 'lgkmcnt(0)' in line: s.lg = []
    def wait_lg(s, tag):
        idx = [i for i, t in enumerate(s.lg) if t == tag]
        if not idx: return
        n = len(s.lg) - 1 - idx[-1]
        if n > 15: n = 15; keep = s.lg[-15:]
        else: keep = s.lg[idx[-1] + 1:]
        s.emit(f's_waitcnt lgkmcnt({n})'); s.lg = keep
    def vmem(s, line, tag): s.emit(line, tag)
    def wait_vm(s, tag):
        idx = [i for i, t in enumerate(s.vm) if t == tag]
        if not idx: return
        n = len(s.vm) - 1 - idx[-1]
        assert n <= 63, n
        s.emit(f's_waitcnt vmcnt({n})'); s.vm = s.vm[idx[-1] + 1:]
    def wait_all(s): s.emit('s_waitcnt vmcnt(0)'); s.vm = []
    def text(s): return '\n'.join((i.text if i.label else '    ' + i.text) for i in s.ins) + '\n'
```

```python
from asm import *
KN = "recurrent_scan__ssm_conv_h3__glu_gated_glu__prompt_kernel"
WS_H, WS_UT, WS_Y, WS_ST, WS_FL, WS_TS = 0, 8 << 20, 12 << 20, 16 << 20, 17 << 20, 18 << 20
WS_EPOCH = WS_FL + 8192
X, WS, RA, RB, WD, OUT, DBG, SK, RC = 8, 12, 16, 20, 24, 28, 32, 36, 40
def srd(r): return f's[{r}:{r+3}]'
sXCD, sSLOT, sW, sNONCE, sT0, sT1, sT2, sT3 = 's3', 's4', 's5', 's6', 's44', 's45', 's46', 's47'
sRB, sGI, sTB, sNT = 's48', 's49', 's50', 's51'
vL = 'v1'
class Cfg:
    ts = False; p2map = 256; pfw = 0
def ts(p, cfg, i):
    if not cfg.ts: return
    p(f's_memtime s[96:97]\ns_waitcnt lgkmcnt(0)\ns_mov_b32 s{80+i}, s96')
def ts_flush(p, cfg, n):
    if not cfg.ts: return
    p(f's_lshl_b32 {sT0}, s2, 8\ns_lshl_b32 {sT1}, {sW}, 6\ns_add_u32 {sT0}, {sT0}, {sT1}\ns_add_u32 {sT0}, {sT0}, {WS_TS}')
    for i in range(n):
        p(f'v_mov_b32 v2, s{80+i}')
        p.vmem(f'buffer_store_dword v2, off, {srd(WS)}, {sT0} offset:{4*i}', 'ts')
def load_srd(p, r, slot, size):
    p(f's_load_dwordx2 s[{r}:{r+1}], s[0:1], {slot*8}\ns_mov_b32 s{r+2}, {size}\ns_mov_b32 s{r+3}, 0x20000')
def prologue(p, cfg):
    p(f's_cmp_ge_u32 s2, 256\ns_cbranch_scc1 L_END')
    if cfg.ts: p('s_memtime s[80:81]')
    load_srd(p, X, 0, 2621440); load_srd(p, WS, 12, 32 << 20); load_srd(p, WD, 9, 2211840)
    load_srd(p, OUT, 10, 2621440); load_srd(p, DBG, 11, 256)
    p(f'''s_and_b32 {sXCD}, s2, 7
    s_lshr_b32 {sSLOT}, s2, 3
    v_lshrrev_b32 v2, 6, v0
    v_and_b32 {vL}, 63, v0
    v_readfirstlane_b32 {sW}, v2
    s_getpc_b64 s[44:45]
    s_lshl_b32 {sT2}, {sSLOT}, 11
    v_and_b32 v2, 15, v0
    v_lshl_add_u32 v2, v2, 7, {sT2}
    v_min_u32 v2, CODE_BYTES, v2
    v_mov_b32 v3, s45
    v_add_co_u32 v2, vcc, s44, v2
    v_addc_co_u32 v3, vcc, 0, v3, vcc''')
    p.vmem('global_load_dword v4, v[2:3], off', 'code')
    if cfg.p2map == 256:
        p(f's_lshr_b32 {sTB}, {sSLOT}, 3\ns_lshl_b32 {sT2}, {sXCD}, 2\ns_add_u32 {sTB}, {sTB}, {sT2}\ns_and_b32 {sNT}, {sSLOT}, 7')
    else:
        p(f's_lshr_b32 {sTB}, {sSLOT}, 2\ns_lshr_b32 {sT2}, {sXCD}, 1\ns_lshl_b32 {sT2}, {sT2}, 3\ns_add_u32 {sTB}, {sTB}, {sT2}')
        p(f's_and_b32 {sNT}, {sSLOT}, 3\ns_and_b32 {sT2}, {sXCD}, 1\ns_lshl_b32 {sT2}, {sT2}, 2\ns_add_u32 {sNT}, {sNT}, {sT2}')
    p(f's_cmp_ge_u32 {sSLOT}, 22\ns_cbranch_scc1 L_CONV')
def publish_nonce(p):
    sv = list(p.vm)
    p(f'''s_add_u32 {sT0}, s2, {sW}
    s_cmp_lg_u32 {sT0}, 0
    s_cbranch_scc1 L_NONONCE
    s_add_u32 s46, s{WS}, {WS_EPOCH}
    s_addc_u32 s47, s{WS+1}, 0
    s_load_dword {sT0}, s[46:47], 0
    s_waitcnt lgkmcnt(0)
    s_mul_i32 {sT1}, {sT0}, 0x9E3779B1
    s_add_u32 {sT1}, {sT1}, 0x7F4A7C15
    s_or_b32 {sT1}, {sT1}, 1
    s_add_u32 {sT2}, {sT1}, 2
    s_cmp_eq_u32 {sT1}, {sT0}
    s_cselect_b32 {sT1}, {sT2}, {sT1}
    v_mov_b32 v2, {sT1}
    s_mov_b32 {sT0}, {WS_EPOCH}
    buffer_store_dword v2, off, {srd(DBG)}, 0 sc0 sc1
    buffer_store_dword v2, off, {srd(WS)}, {sT0} sc0 sc1
L_NONONCE:''')
    p.vm = sv
_lab = [0]
def nonce_load(vt): return f'buffer_load_dword {vt}, off, {srd(DBG)}, 0 sc0 sc1'
def get_nonce(p, vt):
    _lab[0] += 1; n = _lab[0]
    p(f'''s_mov_b32 {sT0}, 0
    s_branch L_GNC{n}
L_GN{n}:
    buffer_load_dword {vt}, off, {srd(DBG)}, 0 sc0 sc1
    s_add_u32 {sT0}, {sT0}, 1
L_GNC{n}:
    s_waitcnt vmcnt(0)
    v_readfirstlane_b32 {sNONCE}, {vt}
    s_cmp_ge_u32 {sT0}, 0x40000
    s_cbranch_scc1 L_GNX{n}
    s_cmp_eq_u32 {sNONCE}, 0
    s_cbranch_scc1 L_GN{n}
L_GNX{n}:''')
def signal(p, sOff):
    _lab[0] += 1; n = _lab[0]
    p(f'''s_waitcnt vmcnt(0)
    s_barrier
    s_cmp_lg_u32 {sW}, 0
    s_cbranch_scc1 L_SG{n}
    v_mov_b32 v2, {sNONCE}
    buffer_store_dword v2, off, {srd(WS)}, {sOff} sc0 sc1
L_SG{n}:''')
    p.vm = ['flag']
def poll(p, vAddr, vt='v2'):
    _lab[0] += 1; n = _lab[0]
    p(f'''s_mov_b32 {sT0}, 0
L_PL{n}:
    buffer_load_dword {vt}, {vAddr}, {srd(WS)}, 0 offen sc0 sc1
    s_add_u32 {sT0}, {sT0}, 1
    s_waitcnt vmcnt(0)
    v_cmp_ne_u32 vcc, {sNONCE}, {vt}
    s_cmp_ge_u32 {sT0}, 0x40000
    s_cbranch_scc1 L_PLX{n}
    s_nop 2
    s_cbranch_vccnz L_PL{n}
L_PLX{n}:''')

RING, NSLOT, STG = 16384, 5, 81920
XB = 96
FR = 32
def gemm1(p, cfg, p2_prefetch):
    load_srd(p, RA, 7, 2211840); load_srd(p, RB, 8, 2211840)
    sKW = [f's{52+j}' for j in range(10)]; sKS = [f's{62+j}' for j in range(5)]
    sQ = ['s67', 's68', 's69']; sP = ['s70', 's71', 's72']; sM0, sROT, sXB, sSO, sONE, sHI = 's73', 's74', 's75', 's76', 's77', 's78'
    p(f'''s_lshr_b32 {sT0}, {sXCD}, 2
    s_mul_i32 {sT0}, {sT0}, 22
    s_add_u32 {sT0}, {sT0}, {sSLOT}
    s_lshr_b32 {sGI}, {sT0}, 2
    s_and_b32 {sT0}, {sT0}, 3
    s_and_b32 {sRB}, {sXCD}, 3
    s_lshl_b32 {sRB}, {sRB}, 2
    s_add_u32 {sRB}, {sRB}, {sT0}
    s_mul_i32 {sROT}, {sRB}, 3
    s_add_u32 {sROT}, {sROT}, {sGI}
    s_mul_i32 {sT0}, {sROT}, 6554
    s_lshr_b32 {sT0}, {sT0}, 16
    s_mul_i32 {sT0}, {sT0}, 10
    s_sub_u32 {sROT}, {sROT}, {sT0}
    s_lshl_b32 {sXB}, {sRB}, 2
    s_add_u32 {sXB}, {sXB}, {sW}
    s_mul_i32 {sXB}, {sXB}, {32*1280}
    s_mul_i32 {sM0}, {sW}, 20480
    s_add_u32 {sM0}, {sM0}, {STG}
    v_lshrrev_b32 v2, 3, {vL}
    v_mul_u32_u24 v5, 1280, v2
    v_lshrrev_b32 v6, 4, {vL}
    v_and_b32 v7, 7, {vL}
    v_xor_b32 v8, v7, v6
    v_lshl_add_u32 v10, v8, 4, v5
    v_xor_b32 v11, 64, v10
    s_waitcnt lgkmcnt(0)''')
    def xdma(j):
        p(f's_add_u32 {sT0}, {sROT}, {j}\ns_sub_u32 {sT1}, {sT0}, 10\ns_cmp_ge_u32 {sT0}, 10\ns_cselect_b32 {sT0}, {sT1}, {sT0}')
        p(f's_mul_i32 {sKW[j]}, {sT0}, {64*3456}\ns_lshl_b32 {sT0}, {sT0}, 7\ns_add_u32 {sT0}, {sT0}, {sXB}')
        for i in range(4):
            p(f's_add_u32 m0, {sM0}, {(j%5)*4096 + i*1024}')
            if i: p(f's_add_u32 {sT0}, {sT0}, {8*1280}')
            p.vmem(f'buffer_load_dwordx4 v{10+(i&1)}, {srd(X)}, {sT0} offen lds', f'x{j}')
    for j in range(5): xdma(j)
    publish_nonce(p)
    p(f'''v_and_b32 v2, 31, {vL}
    v_lshrrev_b32 v3, 5, {vL}
    v_bfe_u32 v5, v2, 1, 3
    v_lshlrev_b32 v8, 7, v2
    v_add_u32 v8, {sM0}, v8''')
    for kk in range(4):
        p(f'v_or_b32 v9, {2*kk}, v3\nv_xor_b32 v9, v9, v5\nv_lshl_add_u32 v{12+kk}, v9, 4, v8')
    p(f'''v_bfe_u32 v2, {vL}, 2, 2
    v_lshl_add_u32 v5, v3, 3, v2
    v_bfe_u32 v8, {vL}, 4, 1
    v_and_b32 v9, 3, {vL}
    v_lshlrev_b32 v22, 3, v9
    v_lshl_add_u32 v22, v8, 5, v22
    v_lshl_add_u32 v20, v5, 6, v22
    v_add_u32 v21, 0x10000, v20
    v_lshrrev_b32 v2, 1, v2
    v_lshlrev_b32 v2, 6, v2
    v_xor_b32 v22, v22, v2
    v_lshl_add_u32 v16, v5, 7, v22
    v_xor_b32 v17, 64, v16
    v_add_u32 v18, 0x10000, v16
    v_add_u32 v19, 0x10000, v17''')
    p(f'''s_lshl_b32 {sT0}, {sW}, 4
    v_lshrrev_b32 v2, 3, {vL}
    v_add_u32 v2, {sT0}, v2
    v_mul_u32_u24 v2, 3456, v2
    v_lshlrev_b32 v8, 2, v8
    v_xor_b32 v8, v8, v7
    v_lshl_add_u32 v22, v8, 4, v2
    v_add_u32 v23, {8*3456}, v22
    s_and_b32 {sT0}, {sW}, 1
    s_lshl_b32 {sT1}, {sT0}, 5
    v_lshrrev_b32 v2, 2, {vL}
    v_add_u32 v2, {sT1}, v2
    v_mul_u32_u24 v2, 3456, v2
    v_lshl_add_u32 v24, v9, 4, v2
    v_add_u32 v25, {16*3456}, v24
    s_lshl_b32 {sT0}, {sT0}, 11
    s_lshr_b32 {sT1}, {sW}, 1
    s_lshl_b32 {sT2}, {sRB}, 1
    s_add_u32 {sT1}, {sT1}, {sT2}
    s_mul_i32 {sT1}, {sT1}, {54*4096}
    s_add_u32 {sT0}, {sT0}, {sT1}
    v_and_b32 v2, 15, {vL}
    v_lshlrev_b32 v2, 4, v2
    v_bfe_u32 v5, {vL}, 4, 1
    v_lshl_add_u32 v2, v5, 10, v2
    v_lshl_add_u32 v2, v3, 8, v2
    v_add_u32 v26, {sT0}, v2
    s_mul_i32 {sT0}, {sGI}, 5
    s_and_b32 {sT1}, {sGI}, 1
    s_add_u32 {sT2}, {sT0}, {sT1}
    s_and_b32 {sT3}, {sRB}, 1
    s_lshl_b32 {sT3}, {sT3}, 1
    s_add_u32 {sP[0]}, {sT2}, {sT3}
    s_xor_b32 {sT3}, {sT3}, 2
    s_add_u32 {sP[1]}, {sT2}, {sT3}
    s_add_u32 {sT2}, {sT0}, 4
    s_cmp_eq_u32 {sT1}, 0
    s_cselect_b32 {sP[2]}, {sT2}, {sT0}
    s_mov_b32 {sONE}, 0x3f803f80
    s_mov_b32 {sHI}, 0xffff0000
    v_mov_b32 v27, 0
    v_mov_b32 v28, 0
    v_mov_b32 v29, 0
    v_mov_b32 v30, 0''')
    for i in range(3): p(f's_lshl_b32 {sQ[i]}, {sP[i]}, 6\ns_lshl_b32 {sP[i]}, {sP[i]}, 12')
    sMW = 's79'
    p(f's_lshl_b32 {sMW}, {sW}, 11')
    def wdma(sl):
        st = min(sl // 10, 2); out = []
        kreg = sKW[sl % 10] if st < 2 else sKS[sl - 20]
        for n, (mat, i) in enumerate(((0, 0), (0, 1), (1, 0), (1, 1))):
            g = []
            if n == 0: g.append((f's_add_u32 {sSO}, {kreg}, {sQ[st]}', None))
            g.append((f's_add_u32 m0, {sMW}, {(sl % NSLOT)*RING + mat*8192 + i*1024}', None))
            g.append((f'buffer_load_dwordx4 v{(22 if st < 2 else 24)+i}, {srd(RB if mat else RA)}, {sSO} offen lds', f'w{sl}'))
            out.append(g)
        return out
    def run(g):
        for t, tag in g: p.emit(t, tag)
    def xread(j):
        p.wait_vm(f'x{j}')
        for kk in range(4):
            r = XB + 16*j + 4*kk
            p.emit(f'ds_read_b128 v[{r}:{r+3}], v{12+kk} offset:{(j%5)*4096}', f'xr{j}')
    def xstat(j):
        p.wait_lg(f'xr{j}')
        if j < 5: xdma(j + 5)
        elif j < 9:
            for g in wdma(j - 5): run(g)
        for q in range(16):
            r = XB + 16*j + q
            p(f'v_dot2_f32_bf16 v{27+(q&1)}, v{r}, {sONE}, v{27+(q&1)}\nv_dot2_f32_bf16 v{29+(q&1)}, v{r}, v{r}, v{29+(q&1)}')
    xread(0)
    for j in range(10):
        if j < 9: xread(j + 1)
        xstat(j)
    for j in range(5):
        p(f's_cmp_ge_u32 {sW}, 2\ns_cselect_b32 {sKS[j]}, {sKW[2*j+1]}, {sKW[2*j]}')
    ts(p, cfg, 1)
    p(f'''v_add_f32 v27, v27, v28
    v_add_f32 v29, v29, v30
    v_mov_b32 v28, v27
    v_mov_b32 v30, v29
    v_permlane32_swap_b32 v27, v28
    v_permlane32_swap_b32 v29, v30
    v_add_f32 v27, v27, v28
    v_add_f32 v29, v29, v30
    v_mul_f32 v27, {1/640!r}, v27
    v_mul_f32 v29, {1/640!r}, v29
    v_fma_f32 v29, -v27, v27, v29
    v_max_f32 v29, 0, v29
    v_cvt_pk_bf16_f32 v30, v27, v29
    v_and_b32 v29, {sHI}, v30
    v_lshlrev_b32 v30, 16, v30
    v_add_f32 v29, 0x3727c5ac, v29
    v_sub_f32 v27, 0, v30
    v_cvt_pk_bf16_f32 v29, v29, v29
    v_and_b32 v29, {sHI}, v29
    v_sqrt_f32 v29, v29
    v_cvt_pk_bf16_f32 v29, v29, v29
    v_and_b32 v28, {sHI}, v29
    v_rcp_f32 v31, v28
    v_mul_f32 v29, 0xbfb8aa3b, v31
    s_cmp_lg_u32 {sGI}, 0
    s_cbranch_scc1 L_NOSTAT
    s_lshl_b32 {sT0}, {sRB}, 2
    s_add_u32 {sT0}, {sT0}, {sW}
    s_lshl_b32 {sT0}, {sT0}, 8
    s_add_u32 {sT0}, {sT0}, {WS_ST}
    v_and_b32 v2, 31, {vL}
    v_lshlrev_b32 v2, 3, v2
    buffer_store_dwordx2 v[30:31], v2, {srd(WS)}, {sT0} offen sc0 sc1
L_NOSTAT:''')
    p.vm.pop()
    sLO1, sHI1 = 's94', 's95'
    p(f's_mov_b32 {sLO1}, 0x00003f80\ns_mov_b32 {sHI1}, 0x3f800000')
    def center(ks):
        out = []
        for q in range(4):
            r = XB + 4*ks + q; t = 64 + 2*q
            out.append(f'v_dot2_f32_bf16 v{t}, v{r}, {sLO1}, v27')
            out.append(f'v_dot2_f32_bf16 v{t+1}, v{r}, {sHI1}, v27')
        for q in range(4):
            r = XB + 4*ks + q; t = 64 + 2*q
            out.append(f'v_cvt_pk_bf16_f32 v{r}, v{t}, v{t+1}')
        return out
    units = []
    for sl in range(25):
        st = min(sl // 10, 2)
        for i in range(16):
            base = (sl % NSLOT) * RING; hi64 = base >= 65536; base &= 0xffff
            if st < 2:
                kk, t = i >> 2, i & 3; mat, th = t >> 1, t & 1
                ks = (sl % 10) * 4 + kk
                addr = f'v{16 + th + (2 if hi64 else 0)}'; off = base + mat*8192 + kk*2048; h2 = 512
                acc = (st & 1) * 64 + 16 * t; first = ks == 0
            else:
                kk, mat = i >> 1, i & 1
                ks = (sl - 20) * 8 + kk
                addr = f'v{21 if hi64 else 20}'; off = base + mat*8192 + kk*1024; h2 = 256
                acc = 32 * mat; first = ks == 0
            units.append(dict(sl=sl, i=i, st=st, ks=ks, addr=addr, off=off, h2=h2, acc=acc, first=first))
    def fread(u):
        d = units[u]; r = FR + 4 * (u % 8)
        p.emit(f'ds_read_b64_tr_b16 v[{r}:{r+1}], {d["addr"]} offset:{d["off"]}', f'f{u}')
        p.emit(f'ds_read_b64_tr_b16 v[{r+2}:{r+3}], {d["addr"]} offset:{d["off"]+d["h2"]}', f'f{u}')
    def glu(accg, accu, pair_reg, extra, cond=False):
        out = []
        for a in range(2):
            for q in range(2):
                r0 = 8*a + 4*q; T = 72; U = 76; D = 80 + 4*a + 2*q
                out += [[(f'v_accvgpr_read_b32 v{T+e}, a{accg+r0+e}', None)] for e in range(4)]
                out += [[(f'v_mul_f32 v{T+e}, v29, v{T+e}', None)] for e in range(4)]
                out += [[(f'v_exp_f32 v{T+e}, v{T+e}', None)] for e in range(4)]
                out += [[(f'v_accvgpr_read_b32 v{U+e}, a{accu+r0+e}', None)] for e in range(4)]
                out += [[(f'v_fma_f32 v{T+e}, v{T+e}, v28, v28', None)] for e in range(4)]
                out += [[(f'v_rcp_f32 v{T+e}, v{T+e}', None)] for e in range(4)]
                out += [[(f'v_mul_f32 v{U+e}, v{U+e}, v{T+e}', None)] for e in range(4)]
                out += [[(f'v_cvt_pk_bf16_f32 v{D+e}, v{U+2*e}, v{U+2*e+1}', None)] for e in range(2)]
            out.append([(f'buffer_store_dwordx4 v[{80+4*a}:{83+4*a}], v26, {srd(WS)}, {pair_reg} offen offset:{a*512} sc0 sc1', 'h')])
            if extra and a == 1: out.append([(f's_add_u32 {pair_reg}, {pair_reg}, 4096', None)])
        return out
    LEAD = cfg.lead
    for ks in range(LEAD):
        for t in center(ks): p(t)
    p.wait_vm('w0'); p('s_barrier')
    for u in range(4): fread(u)
    ts(p, cfg, 2)
    fill = []; dmaq = []
    for u, d in enumerate(units):
        sl, i, st = d['sl'], d['i'], d['st']
        if i == 0 and sl in (10, 20):
            if cfg.ts: ts(p, cfg, 3 if sl == 10 else 4)
            if sl == 20: p.vmem(nonce_load('v31'), 'nonce')
            b = (st - 1) * 64
            fill = glu(b, b + 32, sP[st-1], True) + glu(b + 16, b + 48, sP[st-1], False)
            fill0 = len(fill); ustart = u + 3; uend = u + (150 if st < 2 else 74)
        if i == 12 and sl < 24:
            p.wait_vm(f'w{sl+1}'); p('s_barrier')
            if sl + 4 < 25: dmaq = wdma(sl + 4)
        p.wait_lg(f'f{u}')
        r = FR + 4 * (u % 8); b = XB + 4 * d['ks']; a = d['acc']
        p(f'v_mfma_f32_32x32x16_bf16 a[{a}:{a+15}], v[{r}:{r+3}], v[{b}:{b+3}], {0 if d["first"] else f"a[{a}:{a+15}]"}')
        if u + 4 < len(units): fread(u + 4)
        if dmaq and (u % 2 == 0): run(dmaq.pop(0))
        elif not dmaq and p2_prefetch and sl >= cfg.pf_start and (u % 4 == 1): run(p2_prefetch.pop(0))
        if st == 0:
            ks = d['ks'] + LEAD
            if ks < 40:
                c = center(ks)
                for t in c[3*(i & 3): 3*(i & 3) + 3]: p(t)
        elif fill and u >= ustart:
            want = fill0 - int(fill0 * (u - ustart + 1) / (uend - ustart) + 0.999)
            while fill and len(fill) > want: run(fill.pop(0))
    assert not fill and not dmaq
    while p2_prefetch: run(p2_prefetch.pop(0))
    ts(p, cfg, 5)
    p(f's_cmp_eq_u32 {sGI}, 10\ns_cbranch_scc1 L_G1DONE')
    for g in glu(0, 32, sP[2], False): run(g)
    p('L_G1DONE:')
    get_nonce(p, 'v31')
    p(f's_lshl_b32 {sT1}, {sRB}, 7\ns_lshl_b32 {sT2}, {sGI}, 2\ns_add_u32 {sT1}, {sT1}, {sT2}\ns_add_u32 {sT1}, {sT1}, {WS_FL}')
    signal(p, sT1)
    ts(p, cfg, 6)
```

```python
import sys
from gen1 import *
import gen1
HCH, HCP = 16640, 4160
UB = 8 * HCH
def conv(p, cfg, p2_setup, p2_prefetch):
    sCB, sCG, sCH, sM0, sUB, sHI = 's52', 's53', 's54', 's55', 's56', 's57'
    p('L_CONV:'); p.vm = ['code']; p.lg = []
    load_srd(p, RA, 1, 2621440); load_srd(p, RB, 2, 2621440); load_srd(p, SK, 4, 2621440); load_srd(p, RC, 3, 5120)
    p(f'''s_load_dwordx2 s[58:59], s[0:1], 40
    s_sub_u32 {sCB}, {sSLOT}, 22
    s_lshl_b32 {sCG}, {sCB}, 3
    s_add_u32 {sCG}, {sCG}, {sXCD}
    s_mul_i32 {sT0}, {sXCD}, {256*1280}
    s_lshl_b32 {sT1}, {sCB}, 7
    s_add_u32 {sT0}, {sT0}, {sT1}
    v_lshrrev_b32 v2, 3, v0
    v_and_b32 v3, 7, v0
    v_mul_u32_u24 v5, {8*1280}, v2
    v_lshl_add_u32 v5, v3, 4, v5
    v_add_u32 v5, {sT0}, v5
    v_subrev_u32 v6, 3840, v5
    s_lshl_b32 {sT1}, {sCB}, 9
    v_lshlrev_b32 v7, 6, v3
    v_add_u32 v7, {sT1}, v7
    s_mov_b32 {sT2}, 3840
    s_mov_b32 {sT3}, 7680
    s_mov_b32 {sHI}, 0xffff0000
    s_waitcnt lgkmcnt(0)''')
    K0, V0, S0, SF = 64, 108, 140, 160
    for i in range(4): p.vmem(f'buffer_load_dwordx4 v[{S0+4*i}:{S0+4*i+3}], v7, {srd(RC)}, 0 offen offset:{16*i}', 'sh')
    for i in range(3): p.vmem(f'buffer_load_dwordx4 v[{K0+4*i}:{K0+4*i+3}], v6, {srd(RA)}, 0 offen offset:{1280*i}', 'k')
    for i in range(8):
        so = ['0', sT2, sT3][i // 3]
        p.vmem(f'buffer_load_dwordx4 v[{K0+12+4*i}:{K0+15+4*i}], v5, {srd(RA)}, {so} offen offset:{1280*(i%3)}', 'k')
    for i in range(8):
        so = ['0', sT2, sT3][i // 3]
        p.vmem(f'buffer_load_dwordx4 v[{V0+4*i}:{V0+4*i+3}], v5, {srd(RB)}, {so} offen offset:{1280*(i%3)}', 'v')
    p(f'''s_lshl_b32 {sCH}, {sCG}, 3
    s_add_u32 {sCH}, {sCH}, {sW}
    s_lshl_b32 {sT0}, {sCH}, 1
    s_and_b32 {sT0}, {sT0}, 0xfffffffc
    s_add_u32 s58, s58, {sT0}
    s_addc_u32 s59, s59, 0
    s_load_dword s60, s[58:59], 0
    s_load_dword s61, s[58:59], 8
    s_mul_i32 {sM0}, {sW}, {HCH}
    s_mul_i32 {sUB}, {sW}, 4608
    s_add_u32 {sUB}, {sUB}, {UB}
    v_lshlrev_b32 v8, 4, {vL}
    v_add_u32 v9, 2, v8
    v_add_u32 v10, 4, v8
    v_add_u32 v11, 6, v8''')
    def hdma(rnd):
        out = [[(f's_add_u32 {sT0}, {sCH}, {4*rnd}', None), (f's_lshl_b32 s62, {sT0}, 12', None),
                (f'buffer_load_dwordx2 v[12:13], off, {srd(SK)}, s62', f'h{rnd}')]]
        for b in range(4):
            g = [(f's_add_u32 m0, {sM0}, {rnd*4*HCH + b*HCP + 32}', None)]
            for q in range(4):
                g.append((f'buffer_load_dwordx4 v{8+b}, {srd(SK)}, s62 offen offset:{1024*q} lds', f'h{rnd}'))
                out.append(g); g = []
        return out
    def hhead(rnd):
        p(f'''v_and_b32 v2, 3, {vL}
        v_lshlrev_b32 v3, 4, v2
        v_sub_u32 v3, 64, v3
        v_lshlrev_b64 v[18:19], v3, v[12:13]
        v_cmp_eq_u32 vcc, 0, v2
        v_mov_b32 v16, 0
        v_mov_b32 v17, 0
        v_cndmask_b32 v18, v18, v16, vcc
        v_cndmask_b32 v19, v19, v16, vcc
        v_mul_u32_u24 v2, {HCP}, v2
        s_add_u32 {sT0}, {sM0}, {rnd*4*HCH}
        v_add_u32 v2, {sT0}, v2
        ds_write_b64 v2, v[16:17]
        ds_write_b64 v2, v[16:17] offset:8
        ds_write_b128 v2, v[16:19] offset:16''')
    def run(g):
        for t, tag in g: p.emit(t, tag)
    for g in hdma(0): run(g)
    p.vmem(nonce_load('v31'), 'nonce')
    STGC = 4 * HCH
    p(f'''v_lshrrev_b32 v2, 3, v0
    v_and_b32 v3, 7, v0
    v_sub_u32 v2, 31, v2
    v_xor_b32 v2, v2, v3
    v_lshlrev_b32 v2, 4, v2
    v_lshl_add_u32 v14, v3, 12, v2
    v_add_u32 v14, {STGC}, v14
    v_mov_b32 v16, 0
    v_mov_b32 v17, 0
    v_mov_b32 v18, 0
    v_mov_b32 v19, 0
    v_and_b32 v2, 31, {vL}
    v_lshlrev_b32 v2, 4, v2
    v_add_u32 v2, {sUB}, v2
    ds_write_b128 v2, v[16:19] offset:4096''')
    p.wait_vm('sh')
    for cc in range(8):
        for j in range(4):
            r = S0 + 2*cc + (j >> 1)
            p(f'v_and_b32 v{SF+8*j+cc}, {sHI}, v{r}' if j & 1 else f'v_lshlrev_b32 v{SF+8*j+cc}, 16, v{r}')
    ts(p, cfg, 1)
    KU, VU, R, PK = 192, 214, 216, 232
    p.wait_vm('k')
    for cp in range(4):
        for i in range(11):
            p(f'v_lshlrev_b32 v{KU+2*i}, 16, v{K0+4*i+cp}\nv_and_b32 v{KU+2*i+1}, {sHI}, v{K0+4*i+cp}')
        for j in range(4):
            for t in range(8):
                k = KU + 2*(t + 3 - j); s = SF + 8*j + 2*cp; r = R + 2*t
                if j == 0: p(f'v_pk_mul_f32 v[{r}:{r+1}], v[{k}:{k+1}], v[{s}:{s+1}]')
                else: p(f'v_pk_fma_f32 v[{r}:{r+1}], v[{k}:{k+1}], v[{s}:{s+1}], v[{r}:{r+1}]')
        if cp == 0: p.wait_vm('v')
        for t in range(8):
            p(f'v_lshlrev_b32 v{KU+2*t}, 16, v{V0+4*t+cp}\nv_and_b32 v{KU+2*t+1}, {sHI}, v{V0+4*t+cp}')
        for t in range(8):
            r = R + 2*t; p(f'v_pk_mul_f32 v[{r}:{r+1}], v[{r}:{r+1}], v[{KU+2*t}:{KU+2*t+1}]')
        for e in range(2):
            d0 = PK + 8*(cp & 1) + 4*e
            for d in range(4): p(f'v_cvt_pk_bf16_f32 v{d0+d}, v{R+2*(7-2*d)+e}, v{R+2*(6-2*d)+e}')
            p.emit(f'ds_write_b128 v14, v[{d0}:{d0+3}] offset:{(2*cp+e)*512}', 'st')
    p(f'''v_lshrrev_b32 v2, 5, {vL}
    v_and_b32 v3, 31, {vL}
    s_lshl_b32 {sT0}, {sW}, 1
    v_xor_b32 v5, {sT0}, v3
    v_lshlrev_b32 v5, 4, v5
    v_lshl_add_u32 v5, v2, 9, v5
    s_lshl_b32 {sT0}, {sW}, 13
    s_add_u32 {sT0}, {sT0}, {STGC}
    v_add_u32 v5, {sT0}, v5
    v_xor_b32 v6, 16, v5
    v_lshlrev_b32 v7, 4, v3
    v_lshl_add_u32 v7, v2, 12, v7
    s_lshl_b32 {sT0}, {sCB}, 2
    s_add_u32 {sT0}, {sT0}, {sW}
    s_lshl_b32 {sT0}, {sT0}, 16
    s_sub_u32 {sT1}, 7, {sXCD}
    s_lshl_b32 {sT1}, {sT1}, 9
    s_add_u32 {sT0}, {sT0}, {sT1}
    s_add_u32 {sT0}, {sT0}, {WS_UT}
    s_waitcnt lgkmcnt(0)
    s_barrier''')
    for i in range(8): p.emit(f'ds_read_b128 v[{64+4*i}:{67+4*i}], v{5 + (i >> 2)} offset:{i*1024}', f'rb{i}')
    for i in range(8):
        p.wait_lg(f'rb{i}')
        p.vmem(f'buffer_store_dwordx4 v[{64+4*i}:{67+4*i}], v7, {srd(WS)}, {sT0} offen sc0 sc1', 'ust')
        p(f's_add_u32 {sT0}, {sT0}, 8192')
    ts(p, cfg, 2)
    get_nonce(p, 'v31')
    p(f's_add_u32 {sT1}, {sCB}, 24\ns_lshl_b32 {sT1}, {sT1}, 7\ns_add_u32 s63, {sT1}, {WS_FL}\ns_lshl_b32 {sT2}, {sXCD}, 2\ns_add_u32 {sT1}, s63, {sT2}')
    signal(p, sT1)
    hhead(0)
    p(f'''v_and_b32 v2, 15, {vL}
    v_lshrrev_b32 v3, 4, {vL}
    v_add_u32 v5, 1, v2
    v_and_b32 v6, 3, v5
    v_lshrrev_b32 v5, 2, v5
    v_mul_u32_u24 v6, {HCP}, v6
    v_lshl_add_u32 v6, v5, 3, v6
    v_lshl_add_u32 v6, v3, 4, v6
    v_add_u32 v20, {sM0}, v6
    v_add_u32 v21, {4*HCH}, v20
    v_lshlrev_b32 v5, 5, v2
    v_sub_u32 v5, 480, v5
    v_lshl_add_u32 v5, v3, 4, v5
    v_add_u32 v22, {sUB}, v5
    v_and_b32 v5, 1, v3
    v_lshlrev_b32 v5, 9, v5
    v_lshrrev_b32 v6, 2, v2
    v_lshl_add_u32 v5, v6, 7, v5
    v_lshrrev_b32 v6, 1, v3
    v_lshl_add_u32 v5, v6, 6, v5
    v_and_b32 v6, 3, v2
    v_lshl_add_u32 v23, v6, 4, v5
    v_lshlrev_b32 v5, 3, v3
    v_add_u32 v5, v5, v2
    v_sub_u32 v5, 15, v5
    s_and_b32 {sT0}, {sW}, 1
    s_lshl_b32 {sT0}, {sT0}, 4
    s_lshr_b32 s60, s60, {sT0}
    s_lshr_b32 s61, s61, {sT0}
    s_and_b32 s60, s60, 0xffff
    s_and_b32 s61, s61, 0xffff
    v_and_b32 v6, 1, v5
    v_lshlrev_b32 v6, 4, v6
    v_lshlrev_b32 v7, v6, s60
    v_lshlrev_b32 v6, v6, s61
    v_ashrrev_i32 v5, 1, v5''')
    for d in range(4):
        p(f'v_cmp_eq_u32 vcc, {d}, v5\nv_cndmask_b32 v{24+d}, 0, v7, vcc\nv_cndmask_b32 v{28+d}, 0, v6, vcc')
    p2_setup(p)
    p(f'v_and_b32 v2, 7, {vL}\nv_lshlrev_b32 v2, 2, v2\nv_add_u32 v3, s63, v2')
    poll(p, 'v3')
    ts(p, cfg, 3)
    p(f's_lshl_b32 {sT0}, {sCH}, 12\ns_add_u32 {sT0}, {sT0}, {WS_UT}\ns_mov_b32 m0, {sUB}\ns_add_u32 {sT1}, {sT0}, {4*4096}')
    for q in range(4): p.vmem(f'buffer_load_dwordx4 v8, {srd(WS)}, {sT0} offen offset:{1024*q} sc0 sc1 lds', 'u0')
    for q in range(4): p.vmem(f'buffer_load_dwordx4 v[{224+4*q}:{227+4*q}], v8, {srd(WS)}, {sT1} offen offset:{1024*q} sc0 sc1', 'u1')
    side = hdma(1)
    p.wait_vm('u0')
    FA, FB, ACC = 64, 96, 192
    def reads(rnd, r):
        o = []; b = (r & 1) * 64
        for q in range(8):
            a = FA + b + 4*q; c = FB + b + 4*q
            o.append((f'ds_read_b128 v[{c}:{c+3}], v22 offset:{512*(7-q) + 64*r}', f'B{q}'))
            o.append((f'ds_read_b64 v[{a}:{a+1}], v{20+rnd} offset:{512*q + 64*r}', f'A{q}'))
            o.append((f'ds_read_b64 v[{a+2}:{a+3}], v{20+rnd} offset:{512*q + 64*r + 8}', f'A{q}'))
        return o
    for rnd in range(2):
        for t, tag in reads(rnd, 0): p.emit(t, f'{tag}_0')
        for r in range(8):
            nxt = reads(rnd, r + 1) if r < 7 else []
            b = (r & 1) * 64; n = 0
            seq = [(pp, q) for m in range(8) for (pp, q) in [(m, x) for x in range(m + 1)] + [(x, m) for x in range(m)] if pp + q < 8]
            started = set()
            if r == 0: seq = [x for q in range(8) for x in [(-1, q)] + [y for y in seq if max(y) == q]]
            for pp, q in seq:
                m = max(pp, q)
                p.wait_lg(f'A{m}_{r}' if pp >= 0 else f'B{m}_{r}')
                J = q + max(pp, 0); a = ACC + 4*J; c = FB + b + 4*q
                fa = f'v[{FA+b+4*pp}:{FA+b+4*pp+3}]' if pp >= 0 else f'v[{24+4*rnd}:{27+4*rnd}]'
                first = r == 0 and J not in started; started.add(J)
                p(f'v_mfma_f32_16x16x32_bf16 v[{a}:{a+3}], {fa}, v[{c}:{c+3}], {0 if first else f"v[{a}:{a+3}]"}')
                n += 1
                if nxt and n >= 8: t, tag = nxt.pop(0); p.emit(t, f'{tag}_{r+1}')
                if n % 12 == 6:
                    if rnd == 0 and side: run(side.pop(0))
                    elif rnd == 1 and p2_prefetch: run(p2_prefetch.pop(0))
            assert not nxt
        if rnd == 0:
            assert not side
            p.wait_vm('h1'); hhead(1)
            p(f'v_add_u32 v2, {sUB}, v8')
            for q in range(4): p(f'ds_write_b128 v2, v[{224+4*q}:{227+4*q}] offset:{1024*q}')
        p(f's_add_u32 {sT0}, {sCH}, {4*rnd}\ns_lshl_b32 {sT0}, {sT0}, 12\ns_add_u32 {sT0}, {sT0}, {WS_Y}')
        for J in range(0, 8, 2):
            d = 240 + 2*J; a = ACC + 4*J
            for e in range(4): p(f'v_cvt_pk_bf16_f32 v{d+e}, v{a+2*e}, v{a+2*e+1}')
            p(f'v_permlane16_swap_b32 v{d}, v{d+2}\nv_permlane16_swap_b32 v{d+1}, v{d+3}')
            p.vmem(f'buffer_store_dwordx4 v[{d}:{d+3}], v23, {srd(WS)}, {sT0} offen offset:{512*J} sc0 sc1', 'y')
        p('s_waitcnt lgkmcnt(0)')
        ts(p, cfg, 4 + rnd)
    while p2_prefetch: run(p2_prefetch.pop(0))
    p(f'''s_mul_i32 {sT0}, {sCG}, 6554
    s_lshr_b32 {sT0}, {sT0}, 16
    s_mul_i32 {sT1}, {sT0}, 10
    s_sub_u32 {sT1}, {sCG}, {sT1}
    s_add_u32 {sT0}, {sT0}, 16
    s_lshl_b32 {sT0}, {sT0}, 7
    s_lshl_b32 {sT1}, {sT1}, 2
    s_add_u32 {sT1}, {sT1}, {sT0}
    s_add_u32 {sT1}, {sT1}, {WS_FL}''')
    signal(p, sT1)
    ts(p, cfg, 6)

sKS2 = [f's{52+i}' for i in range(14)]
def p2_ks_table(p, rot):
    p(f's_mul_i32 {sT0}, {sW}, 14\ns_cmp_eq_u32 {sW}, 3\ns_cselect_b32 {sT0}, 41, {sT0}\ns_mul_i32 {sT1}, {sNT}, {rot}\ns_add_u32 {sT0}, {sT0}, {sT1}')
    for i in range(14):
        p(f's_sub_u32 {sT1}, {sT0}, 54\ns_cmp_ge_u32 {sT0}, 54\ns_cselect_b32 {sT0}, {sT1}, {sT0}\ns_mov_b32 {sKS2[i]}, {sT0}\ns_add_u32 {sT0}, {sT0}, 1')
    p(f's_cmp_ge_u32 {sW}, 2\ns_cselect_b32 {sKS2[13]}, 8192, {sKS2[13]}')
def phase2(p, cfg):
    p('L_P2:'); p.vm = []; p.lg = []
    sB, sHB = 's66', 's67'
    p2_ks_table(p, cfg.rot2)
    p(f's_mul_i32 {sT0}, {sNT}, 160\ns_mul_i32 {sB}, {sW}, 40960')
    for i in range(5):
        p(f'''v_add_u32 v2, {64*i}, {vL}
        v_mul_u32_u24 v3, 6554, v2
        v_lshrrev_b32 v3, 16, v3
        v_mul_u32_u24 v5, 1120, v3
        v_lshl_add_u32 v5, v2, 4, v5
        v_add_u32 v{10+i}, {sT0}, v5''')
    def wdma(i):
        p(f's_mul_i32 {sT0}, {sKS2[i]}, {32*1280}')
        for q in range(5):
            p(f's_add_u32 m0, {sB}, {(i % 8)*5120 + q*1024}')
            p.vmem(f'buffer_load_dwordx4 v{10+q}, {srd(WD)}, {sT0} offen lds', f'W{i}')
    def wreg(i, mt):
        n = 20*i + 4*mt
        return ('a', n) if n < 256 else ('v', 232 + n - 256)
    def wread(i):
        p.wait_vm(f'W{i}')
        for mt in range(5):
            k, n = wreg(i, mt)
            for hf in range(2):
                p.emit(f'ds_read_b64_tr_b16 {k}[{n+2*hf}:{n+2*hf+1}], v15 offset:{(i % 8)*5120 + mt*32 + hf*1280}', f'R{i}')
    for i in range(8): wdma(i)
    p(f'''v_lshrrev_b32 v2, 5, {vL}
    v_bfe_u32 v3, {vL}, 4, 1
    v_bfe_u32 v5, {vL}, 2, 2
    v_lshl_add_u32 v5, v3, 2, v5
    v_lshl_add_u32 v5, v2, 4, v5
    v_mul_u32_u24 v5, 160, v5
    v_and_b32 v6, 3, {vL}
    v_lshl_add_u32 v5, v6, 3, v5
    v_add_u32 v15, {sB}, v5
    s_mul_i32 {sHB}, {sTB}, {54*4096}
    v_lshlrev_b32 v2, 4, {vL}''')
    for t in range(4):
        p(f's_add_u32 {sT0}, {sW}, {t}\ns_and_b32 {sT0}, {sT0}, 3\ns_lshl_b32 {sT0}, {sT0}, 10\ns_add_u32 {sT0}, {sT0}, {sHB}\nv_add_u32 v{16+t}, {sT0}, v2')
    p(f'''s_lshl_b32 {sT0}, {sTB}, 2
    s_add_u32 {sT0}, {sT0}, {sW}
    s_lshl_b32 {sT0}, {sT0}, 4
    v_and_b32 v2, 15, {vL}
    v_add_u32 v2, {sT0}, v2
    v_lshlrev_b32 v22, 3, v2
    v_mul_u32_u24 v2, 1280, v2
    s_mul_i32 {sT0}, {sNT}, 160
    v_add_u32 v2, {sT0}, v2
    v_lshrrev_b32 v3, 4, {vL}
    v_lshl_add_u32 v21, v3, 3, v2
    v_and_b32 v5, 1, v3
    v_lshl_add_u32 v2, v5, 5, v2
    v_lshrrev_b32 v5, 1, v3
    v_lshl_add_u32 v20, v5, 4, v2
    s_lshr_b32 {sT0}, {sTB}, 1
    s_lshl_b32 {sT0}, {sT0}, 7
    s_add_u32 {sT0}, {sT0}, {WS_FL}
    s_add_u32 {sT1}, {sNT}, 16
    s_lshl_b32 {sT1}, {sT1}, 7
    s_add_u32 {sT1}, {sT1}, {WS_FL}
    v_and_b32 v2, 31, {vL}
    v_min_u32 v3, 10, v2
    v_lshl_add_u32 v23, v3, 2, {sT0}
    v_min_u32 v3, 9, v2
    v_lshl_add_u32 v24, v3, 2, {sT1}''')
    XR = 40
    p.vmem(f'buffer_load_dwordx4 v[{XR}:{XR+3}], v20, {srd(X)}, 0 offen', 'x')
    p.vmem(f'buffer_load_dwordx4 v[{XR+4}:{XR+7}], v20, {srd(X)}, 0 offen offset:64', 'x')
    p.vmem(f'buffer_load_dwordx2 v[{XR+8}:{XR+9}], v21, {srd(X)}, 0 offen offset:128', 'x')
    for i in range(14):
        wread(i)
        if i + 8 < 14: p.wait_lg(f'R{i}'); wdma(i + 8)
    ts(p, cfg, 7)
    poll(p, 'v23')
    ts(p, cfg, 8)
    HF, ACC, DEP = 52, 148, cfg.dep
    def hload(i):
        p(f's_lshl_b32 {sT0}, {sKS2[i]}, 12')
        for t in range(4):
            r = HF + 16*(i % DEP) + 4*t
            p.vmem(f'buffer_load_dwordx4 v[{r}:{r+3}], v{16+t}, {srd(WS)}, {sT0} offen sc0 sc1', f'H{i}_{t}')
    for i in range(DEP): hload(i)
    p(f's_mov_b32 {sT1}, {WS_ST}')
    p.vmem(f'buffer_load_dwordx2 v[50:51], v22, {srd(WS)}, {sT1} offen sc0 sc1', 'st')
    p('s_waitcnt lgkmcnt(0)')
    for i in range(14):
        for t in range(4):
            p.wait_vm(f'H{i}_{t}')
            r = HF + 16*(i % DEP) + 4*t
            for mt in range(5):
                k, n = wreg(i, mt); a = ACC + 20*t + 4*mt
                p(f'v_mfma_f32_16x16x32_bf16 v[{a}:{a+3}], {k}[{n}:{n+3}], v[{r}:{r+3}], {0 if i == 0 else f"v[{a}:{a+3}]"}')
        if i + DEP < 14: hload(i + DEP)
    ts(p, cfg, 9)
    YB, RED = 61440, 0
    poll(p, 'v24')
    p(f'''s_barrier
    v_lshrrev_b32 v2, 3, {vL}
    v_and_b32 v3, 7, {vL}
    v_lshlrev_b32 v2, 12, v2
    v_lshl_add_u32 v2, v3, 4, v2
    s_mul_i32 {sT0}, {sNT}, 80
    s_mul_i32 {sT1}, {sW}, 24
    s_add_u32 {sT0}, {sT0}, {sT1}
    s_lshl_b32 {sT0}, {sT0}, 12
    s_lshl_b32 {sT2}, {sTB}, 7
    s_add_u32 {sT0}, {sT0}, {sT2}
    s_add_u32 {sT0}, {sT0}, {WS_Y}
    s_mul_i32 {sT1}, {sW}, 3072''')
    for q in range(3):
        p(f's_add_u32 m0, {sT1}, {YB + q*1024}')
        p.vmem(f'buffer_load_dwordx4 v2, {srd(WS)}, {sT0} offen sc0 sc1 lds', 'y')
        p(f's_add_u32 {sT0}, {sT0}, {8*4096}')
    p(f'v_lshlrev_b32 v3, 4, {vL}')
    for t in range(1, 4):
        p(f's_add_u32 {sT0}, {sW}, {t}\ns_and_b32 {sT0}, {sT0}, 3\ns_mul_i32 {sT0}, {sT0}, 15360\nv_add_u32 v5, {sT0}, v3')
        for mt in range(5):
            a = ACC + 20*t + 4*mt
            p(f'ds_write_b128 v5, v[{a}:{a+3}] offset:{RED + (t-1)*5120 + mt*1024}')
    p(f'''s_mul_i32 {sT0}, {sW}, 15360
    v_add_u32 v5, {sT0}, v3
    v_lshrrev_b32 v2, 2, {vL}
    v_lshlrev_b32 v2, 7, v2
    v_bfe_u32 v3, {vL}, 1, 1
    v_lshl_add_u32 v2, v3, 6, v2
    v_and_b32 v3, 1, {vL}
    v_lshl_add_u32 v2, v3, 3, v2
    s_lshl_b32 {sT0}, {sW}, 4
    s_add_u32 {sT0}, {sT0}, {YB}
    v_add_u32 v6, {sT0}, v2
    s_mov_b32 {sT3}, 0xffff0000
    v_permlane16_swap_b32 v{XR}, v{XR+2}
    v_permlane16_swap_b32 v{XR+1}, v{XR+3}
    v_permlane16_swap_b32 v{XR+4}, v{XR+6}
    v_permlane16_swap_b32 v{XR+5}, v{XR+7}
    s_waitcnt vmcnt(0) lgkmcnt(0)
    s_barrier''')
    PR, YR, XF, SF, OP = 52, 112, 168, 188, 28
    for mt in range(5):
        for t in range(3): p.emit(f'ds_read_b128 v[{PR+20*t+4*mt}:{PR+20*t+4*mt+3}], v5 offset:{RED + t*5120 + mt*1024}', f'P{mt}')
        p.emit(f'ds_read_b64_tr_b16 v[{YR+2*mt}:{YR+2*mt+1}], v6 offset:{mt*2048}', f'P{mt}')
    for n in range(20):
        src = XR + (n >> 1)
        p(f'v_and_b32 v{XF+n}, {sT3}, v{src}' if n & 1 else f'v_lshlrev_b32 v{XF+n}, 16, v{src}')
    for n in range(20): p(f'v_sub_f32 v{SF+n}, v{XF+n}, v50')
    for n in range(20): p(f'v_mul_f32 v{SF+n}, v{SF+n}, v51')
    for mt in range(5):
        p.wait_lg(f'P{mt}')
        R4 = range(4*mt, 4*mt + 4)
        for t in range(3):
            for n in R4: p(f'v_add_f32 v{ACC+n}, v{ACC+n}, v{PR+20*t+n}')
        for n in R4: p(f'v_mul_f32 v{PR+n}, 0xbfb8aa3b, v{ACC+n}')
        for n in R4: p(f'v_exp_f32 v{PR+n}, v{PR+n}')
        for n in R4:
            src = YR + (n >> 1)
            p(f'v_and_b32 v{PR+20+n}, {sT3}, v{src}' if n & 1 else f'v_lshlrev_b32 v{PR+20+n}, 16, v{src}')
        for n in R4: p(f'v_add_f32 v{PR+n}, 1.0, v{PR+n}')
        for n in R4: p(f'v_rcp_f32 v{PR+n}, v{PR+n}')
        for n in R4: p(f'v_mul_f32 v{SF+n}, v{SF+n}, v{PR+20+n}')
        for n in R4: p(f'v_mul_f32 v{PR+n}, v{PR+n}, v{ACC+n}')
        for n in R4: p(f'v_fma_f32 v{XF+n}, v{SF+n}, v{PR+n}, v{XF+n}')
        for e in range(2): p(f'v_cvt_pk_bf16_f32 v{OP+2*mt+e}, v{XF+4*mt+2*e}, v{XF+4*mt+2*e+1}')
        if mt in (1, 3):
            d = OP + 2*(mt - 1)
            p(f'v_permlane16_swap_b32 v{d}, v{d+2}\nv_permlane16_swap_b32 v{d+1}, v{d+3}')
            p.vmem(f'buffer_store_dwordx4 v[{d}:{d+3}], v20, {srd(OUT)}, 0 offen offset:{32*(mt-1)}', 'o')
    p.vmem(f'buffer_store_dwordx2 v[{OP+8}:{OP+9}], v21, {srd(OUT)}, 0 offen offset:128', 'o')
    ts(p, cfg, 10)
    ts_flush(p, cfg, 11)

def build(cfg):
    gen1._lab[0] = 0
    p = Prog()
    prologue(p, cfg)
    gemm1(p, cfg, [])
    p('s_branch L_P2')
    conv(p, cfg, lambda p: None, [])
    phase2(p, cfg)
    p('L_END:')
    body = p.text()
    nbytes = sum(8 if (i.kind in ('mfma', 'ds', 'vmem') or 'x' in i.text) else 6 for i in p.ins)
    head = open('recurrent_scan__ssm_conv_h3__glu_gated_glu__prompt.s.ref').read().split('; Override')[0]
    return head + f'''; @launch grid=(256,1,1) block=(256,1,1) lds=163840
.amdgcn_target "amdgcn-amd-amdhsa--gfx950"
.text
.globl {KN}
.p2align 8
.type {KN},@function
{KN}:
{body.replace("CODE_BYTES", "(L_END-" + KN + "-256)")}    s_endpgm
.section .rodata,"a"
.p2align 6
.amdhsa_kernel {KN}
  .amdhsa_next_free_vgpr 512
  .amdhsa_next_free_sgpr 102
  .amdhsa_accum_offset 256
  .amdhsa_group_segment_fixed_size 0
  .amdhsa_kernarg_size 104
  .amdhsa_user_sgpr_count 2
  .amdhsa_user_sgpr_kernarg_segment_ptr 1
  .amdhsa_system_sgpr_workgroup_id_x 1
.end_amdhsa_kernel
''', p
if __name__ == '__main__':
    cfg = Cfg(); cfg.lead = 2; cfg.pf_start = 12; cfg.rot2 = 7; cfg.dep = 6
    out = sys.argv[1]
    for a in sys.argv[2:]:
        k, v = a.split('='); setattr(cfg, k, int(v))
    s, p = build(cfg)
    open(out, 'w').write(s)
    print('instrs', len(p.ins), 'nops', p.nops)
```
